```python
import torch

def _softmax(x, axis=-1):
    return torch.softmax(x, dim=axis)
def _gelu(x):
    return torch.nn.functional.gelu(x, approximate="tanh")
def _silu(x):
    return torch.nn.functional.silu(x)
def _sigmoid(x):
    return torch.sigmoid(x)
def _layernorm(x, axis=-1, eps=1e-5):
    m = x.mean(dim=axis, keepdim=True)
    v = x.var(dim=axis, keepdim=True, unbiased=False)
    return (x - m) / torch.sqrt(v + eps)
def _scatter_add(tgt, idx, src, axis=0):
    return tgt.clone().index_add_(axis, idx, src)
def _segment_sum(src, seg, n):
    out = torch.zeros((n,) + src.shape[1:], dtype=src.dtype)
    return out.index_add_(0, seg, src)
def _pad(x, pw):
    flat = tuple(v for pair in reversed(pw) for v in pair)
    return torch.nn.functional.pad(x, flat)

kernel_name = 'concat_heads__mha_block_cached__mha_block_cached__near_ridge'

def setup_inputs():

    _w = (lambda a: (lambda t: t.to(torch.bfloat16) if t.is_floating_point() else t)(torch.as_tensor(a)))
    def _A_setup():
        B, Sq, D = 16, 240, 448
        H, Sk, Dh = 16, 512, 256
        return {
            "x": _w((lambda *s: torch.randn(*s, dtype=torch.bfloat16) * 0.8)(B, Sq, D)),
            "k_cache": _w((lambda *s: torch.randn(*s, dtype=torch.bfloat16) * 0.8)(B, H, Sk, Dh)),
            "v_cache": _w((lambda *s: torch.randn(*s, dtype=torch.bfloat16) * 0.05)(B, H, Sk, Dh)),
            "wq": _w((lambda *s: torch.randn(*s, dtype=torch.bfloat16) * 0.8)(D, H * Dh) * (D ** -0.5)),
            "wo": _w((lambda *s: torch.randn(*s, dtype=torch.bfloat16) * 0.05)(H * Dh, D) * ((H * Dh) ** -0.5)),
        }
    _A_in = _A_setup()

    def _B_setup():
        B, Sq, D = 16, 240, 448
        H, Sk, Dh = 16, 512, 256
        return {
            "x": _w((lambda *s: torch.randn(*s, dtype=torch.bfloat16) * 0.8)(B, Sq, D)),
            "k_cache": _w((lambda *s: torch.randn(*s, dtype=torch.bfloat16) * 0.8)(B, H, Sk, Dh)),
            "v_cache": _w((lambda *s: torch.randn(*s, dtype=torch.bfloat16) * 0.05)(B, H, Sk, Dh)),
            "wq": _w((lambda *s: torch.randn(*s, dtype=torch.bfloat16) * 0.8)(D, H * Dh) * (D ** -0.5)),
            "wo": _w((lambda *s: torch.randn(*s, dtype=torch.bfloat16) * 0.05)(H * Dh, D) * ((H * Dh) ** -0.5)),
        }
    _B_in = _B_setup()

    return {
        "A_x": _A_in["x"],
        "A_k_cache": _A_in["k_cache"],
        "A_v_cache": _A_in["v_cache"],
        "A_wq": _A_in["wq"],
        "A_wo": _A_in["wo"],
        "B_x": _B_in["x"],
        "B_k_cache": _B_in["k_cache"],
        "B_v_cache": _B_in["v_cache"],
        "B_wq": _B_in["wq"],
        "B_wo": _B_in["wo"],
    }

def reference(A_x, A_k_cache, A_v_cache, A_wq, A_wo, B_x, B_k_cache, B_v_cache, B_wq, B_wo):
    def _A_ref(x, k_cache, v_cache, wq, wo):
        B, Sq, D = x.shape
        H, Dh = 16, 256
        q = (lambda x, *d: x.permute(*d))((x @ wq).reshape(B, Sq, H, Dh), 0, 2, 1, 3)
        scores = torch.einsum("bhqd,bhkd->bhqk", q, k_cache) * (Dh ** -0.5)
        p = _softmax(scores, axis=-1)
        o = torch.einsum("bhqk,bhkd->bhqd", p, v_cache)
        return (lambda x, *d: x.permute(*d))(o, 0, 2, 1, 3).reshape(B, Sq, H * Dh) @ wo

    def _B_ref(x, k_cache, v_cache, wq, wo):
        B, Sq, D = x.shape
        H, Dh = 16, 256
        q = (lambda x, *d: x.permute(*d))((x @ wq).reshape(B, Sq, H, Dh), 0, 2, 1, 3)
        scores = torch.einsum("bhqd,bhkd->bhqk", q, k_cache) * (Dh ** -0.5)
        p = _softmax(scores, axis=-1)
        o = torch.einsum("bhqk,bhkd->bhqd", p, v_cache)
        return (lambda x, *d: x.permute(*d))(o, 0, 2, 1, 3).reshape(B, Sq, H * Dh) @ wo

    a = _A_ref(A_x, A_k_cache, A_v_cache, A_wq, A_wo)
    b = _B_ref(B_x, B_k_cache, B_v_cache, B_wq, B_wo)
    return torch.concatenate([a, b], axis=-1)
```

```python
import re


def rng(p, lo, n):
    return [f"{p}{i}" for i in range(lo, lo + n)]


def R(p, lo, n=1):
    return f"{p}{lo}" if n == 1 else f"{p}[{lo}:{lo + n - 1}]"


class I:
    __slots__ = ("text", "kind", "r", "w", "cost", "meta")

    def __init__(self, text, kind, r=(), w=(), cost=1, **meta):
        self.text, self.kind, self.r, self.w, self.cost, self.meta = text, kind, set(r), set(w), cost, meta

    def __repr__(self):
        return f"<{self.kind}: {self.text}>"


def regs_of(op):
    m = re.fullmatch(r"-?([vas])\[(\d+):(\d+)\]", op)
    if m:
        return rng(m.group(1), int(m.group(2)), int(m.group(3)) - int(m.group(2)) + 1)
    m = re.fullmatch(r"-?([vas])(\d+)", op)
    if m:
        return [m.group(1) + m.group(2)]
    if op in ("vcc", "m0", "exec"):
        return [op]
    return []


def parse_ops(text):
    parts = text.split(None, 1)
    if len(parts) == 1:
        return parts[0], []
    ops = [o.strip().split()[0] for o in parts[1].split(",") if o.strip()]
    return parts[0], ops


TRANS = ("v_exp_f32", "v_rcp_f32", "v_log_f32", "v_rsq_f32", "v_sqrt_f32")


def op(text, **meta):
    mn, ops = parse_ops(text)
    rs = [regs_of(o) for o in ops]
    flat = lambda xs: [r for x in xs for r in x]
    cost = meta.pop("cost", 1)
    if mn.startswith("v_mfma"):
        return I(text, "mfma", flat(rs[1:]), rs[0], 2, a=rs[1], b=rs[2], c=rs[3], **meta)
    if mn.startswith("v_permlane"):
        return I(text, "valu", flat(rs), flat(rs), cost, perm=True, **meta)
    if mn.startswith("v_cmp"):
        return I(text, "valu", flat(rs[1:]), rs[0], cost, **meta)
    if mn.startswith("v_readfirstlane"):
        return I(text, "valu", flat(rs[1:]), rs[0], cost, rfl=True, **meta)
    if mn.startswith("v_"):
        r = flat(rs[1:])
        if mn.startswith("v_fmac"):
            r += rs[0]
        if mn in TRANS or mn.replace("_e32", "") in TRANS:
            return I(text, "valu", r, rs[0], 2, trans=True, **meta)
        return I(text, "valu", r, rs[0], cost, **meta)
    if mn.startswith("ds_read"):
        return I(text, "dsr", flat(rs[1:]), rs[0], cost, **meta)
    if mn.startswith("ds_write"):
        return I(text, "dsw", flat(rs), [], cost, **meta)
    if mn.startswith("buffer_load") or mn.startswith("global_load"):
        if text.rstrip().endswith("lds"):
            return I(text, "dma", flat(rs) + ["m0"], [], cost, **meta)
        return I(text, "vld", flat(rs[1:]), rs[0], cost, **meta)
    if mn.startswith("buffer_store") or mn.startswith("buffer_atomic"):
        return I(text, "vst", flat(rs), [], cost, data=rs[0], **meta)
    if mn == "s_barrier":
        return I(text, "bar", [], [], cost, **meta)
    if mn == "s_nop":
        return I(text, "nop", [], [], int(ops[0]) + 1, n=int(ops[0]) + 1, **meta)
    if mn == "s_waitcnt":
        vm = re.search(r"vmcnt\((\d+)\)", text)
        lg = re.search(r"lgkmcnt\((\d+)\)", text)
        return I(text, "wait", [], [], cost, N_vm=int(vm.group(1)) if vm else None,
                 N_lg=int(lg.group(1)) if lg else None, fixed=True, **meta)
    if mn.startswith("s_cbranch") or mn in ("s_branch", "s_endpgm", "s_setpc_b64"):
        return I(text, "br", flat(rs), [], cost, **meta)
    if mn.startswith("s_load") or mn.startswith("s_mem"):
        return I(text, "smem", flat(rs[1:]), rs[0], cost, **meta)
    if mn.startswith("s_cmp") or mn.startswith("s_bitcmp"):
        return I(text, "salu", flat(rs), ["scc"], cost, **meta)
    if mn.startswith("s_"):
        return I(text, "salu", flat(rs[1:]), rs[0] if rs else [], cost, **meta)
    raise ValueError(text)


def label(name):
    return I(name + ":", "label", cost=0)


def wait(lg=None, vm=None):
    return I("s_waitcnt ?", "wait", [], [], 1, lg=lg, vm=vm, N_vm=None, N_lg=None)


def sched(mfmas, fixed, streams, cap=2):
    out = []
    pos = [0] * len(streams)
    over = 0
    for g, m in enumerate(mfmas):
        for si, st in enumerate(streams):
            due = [i for i in range(pos[si], len(st)) if st[i][2] is not None and st[i][2] <= g]
            if due:
                for i in range(pos[si], due[-1] + 1):
                    assert st[i][1] <= g, f"deadline before earliest for {st[i][0]}"
                    out.append(st[i][0])
                    over += st[i][0].cost
                pos[si] = due[-1] + 1
        out.append(m)
        fx = fixed.get(g, [])
        first = [x for x in fx if not x.meta.get("last")]
        last = [x for x in fx if x.meta.get("last")]
        used = sum(x.cost for x in fx)
        out += first
        here = [False] * len(streams)
        progress = True
        while progress:
            progress = False
            for si, st in enumerate(streams):
                if pos[si] < len(st):
                    ins, e, _ = st[pos[si]]
                    if e <= g and used + ins.cost <= cap and not (ins.meta.get("newgap") and here[si]):
                        out.append(ins)
                        used += ins.cost
                        pos[si] += 1
                        here[si] = True
                        progress = True
                        break
        out += last
        over += max(0, used - cap)
    left = [it[0] for si, st in enumerate(streams) for it in st[pos[si]:]]
    return out, left, over


class SimError(Exception):
    pass


def _call(x, ctx):
    return x(ctx) if callable(x) else x


def simulate(trace, resolve):
    lgq, vmq = [], []
    slots = {}
    for blk, ctx in trace:
        for ins in blk:
            k, m = ins.kind, ins.meta
            if k == "wait":
                if resolve and not m.get("fixed"):
                    if m["lg"] is not None:
                        need = None if m["lg"] == "all" else set(m["lg"])
                        n = 0
                        if need is not None:
                            idx = [i for i, e in enumerate(lgq) if e["w"] & need]
                            n = len(lgq) - 1 - idx[-1] if idx else 15
                        n = min(n, 15)
                        m["N_lg"] = n if m["N_lg"] is None else min(m["N_lg"], n)
                    if m["vm"] is not None:
                        n = 0
                        if m["vm"] != "all":
                            need = set(_call(m["vm"], ctx))
                            idx = [i for i, e in enumerate(vmq) if e["tag"] in need]
                            n = len(vmq) - 1 - idx[-1] if idx else 63
                        n = min(n, 63)
                        m["N_vm"] = n if m["N_vm"] is None else min(m["N_vm"], n)
                if m["N_lg"] is not None:
                    while len(lgq) > m["N_lg"]:
                        lgq.pop(0)
                if m["N_vm"] is not None:
                    while len(vmq) > m["N_vm"]:
                        vmq.pop(0)
                continue
            if not resolve:
                touched = ins.r | ins.w
                for e in lgq + vmq:
                    if e["w"] & touched:
                        raise SimError(f"{ins} touches {e['w'] & touched} still loading ({ctx})")
            if k in ("dsr", "dsw", "smem"):
                s = _call(m.get("slot"), ctx)
                if s is not None:
                    st = slots.setdefault(s, dict(tag=None, pub=False, rd=0))
                    tag = _call(m["tag"], ctx)
                    if not resolve and (st["tag"] != tag or not st["pub"]):
                        raise SimError(f"{ins} wants {tag} in slot {s}, finds {st} ({ctx})")
                    st["rd"] += 1
                lgq.append(dict(w=set(ins.w), slot=s))
                if k == "smem" and len(ins.w) > 1:
                    lgq.append(dict(w=set(ins.w), slot=None))
            elif k in ("dma", "vld", "vst"):
                tag = _call(m.get("tag"), ctx)
                s = _call(m.get("slot"), ctx)
                if s is not None:
                    st = slots.setdefault(s, dict(tag=None, pub=False, rd=0))
                    if not resolve and st["rd"]:
                        raise SimError(f"{ins} overwrites slot {s} ({st}) with unfenced reads ({ctx})")
                    st["tag"], st["pub"] = tag, False
                vmq.append(dict(w=set(ins.w), tag=tag, slot=s))
                while len(vmq) > 64:
                    vmq.pop(0)
            elif k == "bar":
                for s, st in slots.items():
                    if not any(e["slot"] == s for e in vmq):
                        st["pub"] = True
                    if not any(e["slot"] == s for e in lgq):
                        st["rd"] = 0


def finish_waits(blocks):
    for blk in blocks:
        for ins in blk:
            if ins.kind == "wait" and not ins.meta.get("fixed"):
                parts = []
                if ins.meta["N_vm"] is not None:
                    parts.append(f"vmcnt({ins.meta['N_vm']})")
                if ins.meta["N_lg"] is not None:
                    parts.append(f"lgkmcnt({ins.meta['N_lg']})")
                if not parts:
                    raise SimError("wait never executed in the trace")
                ins.text = "s_waitcnt " + " ".join(parts)


def check_hazards(trace):
    hist = []
    errs = []

    def back():
        d = 0
        for p in reversed(hist):
            yield p, d
            d += p.meta["n"] if p.kind == "nop" else 1
            if d > 12:
                return

    for blk, ctx in trace:
        for ins in blk:
            if ins.kind == "label":
                continue
            k = ins.kind
            for p, d in back():
                need = 0
                vw = {x for x in p.w if x[0] in "va" and x != "vcc"}
                sw = {x for x in p.w if x[0] == "s" or x == "vcc"}
                if p.kind == "valu":
                    if k == "mfma" and vw & ins.r:
                        need = 2
                    if k == "valu" and p.meta.get("trans") and not ins.meta.get("trans") and vw & ins.r:
                        need = max(need, 1)
                    if k == "valu" and ins.meta.get("perm") and vw & ins.r:
                        need = max(need, 2)
                    if k == "valu" and ins.meta.get("rfl") and vw & ins.r:
                        need = max(need, 1)
                    if k in ("dma", "vld", "vst") and sw & ins.r:
                        need = max(need, 5)
                    if k == "valu" and sw & ins.r:
                        need = max(need, 2)
                    if k == "salu" and sw & ins.r:
                        need = max(need, 2)
                elif p.kind == "mfma":
                    if k == "mfma":
                        if p.w & (set(ins.meta["a"]) | set(ins.meta["b"])):
                            need = 8
                        elif p.w & set(ins.meta["c"]) and p.w != set(ins.meta["c"]):
                            need = 6
                        elif p.w & ins.w and p.w != set(ins.meta["c"]):
                            need = 8
                    elif k in ("valu", "vst", "dsw", "dsr", "vld", "dma"):
                        if p.w & (ins.r | ins.w):
                            need = 8
                        elif k == "valu" and set(p.meta["c"]) & ins.w:
                            need = 3
                elif p.kind == "salu":
                    if k == "dma" and "m0" in p.w:
                        need = 1
                elif p.kind == "vst":
                    if len(p.meta["data"]) >= 3 and set(p.meta["data"]) & ins.w:
                        need = 2
                if d < need:
                    errs.append((blk, ins, need - d, f"'{p.text}' -> '{ins.text}' distance {d} < {need} ({ctx})"))
            hist.append(ins)
            if len(hist) > 40:
                del hist[:20]
    return errs


def fix_hazards(trace, log):
    total = 0
    while True:
        errs = check_hazards(trace)
        if not errs:
            return total
        blk, ins, miss, msg = errs[0]
        miss = max(e[2] for e in errs if e[1] is ins)
        blk.insert(next(i for i, x in enumerate(blk) if x is ins), op(f"s_nop {miss - 1}"))
        total += miss
        log.append(f"pad {miss}: {msg}")
```

```python
import sys, os, math, struct
sys.path.insert(0, os.path.dirname(os.path.abspath(__file__)))
from asmlib import *

NAME = "concat_heads__mha_block_cached__mha_block_cached__near_ridge"
OPT = dict(stamp=False, stop=None, kvflag="nt", pflag="", thr=2.0 ** 20, force_fb=False, codepf=True)

S = 16896
BLK = 1056
KSB = 4 * BLK
NSLOT = 8
LDS_BYTES = NSLOT * S
PERM = [4, 3, 5, 0, 6, 7, 1, 2]
WREG = 57344
GREG = 4 * WREG
STAMP_OFF = 256 * GREG
MF = "v_mfma_f32_16x16x32_bf16"

def Q(ks, t): return 16 * ks + 4 * t
def Sr(kt, t): return 128 + 16 * kt + 4 * t
def Pr(par, t): return 160 + 16 * par + 4 * t
def NM(t): return 192 + 4 * t
def F(i): return 208 + 4 * (i % 8)
L0, TS0, TM0 = 240, 244, 248
vK, vV, vD, vW = 252, 253, 254, 255
WADDR = {0: vK, 1: vW, 2: vV}
def Oacc(dt, t): return (dt * 4 + t) * 4

sX, sK, sV, sN, sP = 4, 8, 12, 16, 20
sWave, sLdsW, sKoff, sVoff = 24, 25, 26, 27
sNoff, sNinc, sNlim, sNwrap, sNrow, sNa, sNb, sT = 28, 29, 30, 31, 32, 33, 34, 35
sDl, sPp, sMm, sLoop, sItem, sPad = 36, 37, 38, 39, 40, 41
sXt = 42
sRet = 46
pWq, pWo, pK, pV = 48, 50, 52, 54
sHp, sB, sBr, sA0, sA1, sA2, sA3 = 56, 57, 58, 59, 60, 61, 62
sC, sSa, sSb, sSc, sPadM, sPadL = 64, 65, 66, 67, 68, 69
sStamp = 72

def f2u(x): return "0x%08x" % struct.unpack("<I", struct.pack("<f", x))[0]
def u32(x): return "0x%08x" % (x & 0xFFFFFFFF)
def Kslot(j): return (j + 1) % 4
def Vslot(j): return 4 + j % 4
def srd(b): return f"s[{b}:{b + 3}]"

stamp_n = [0]
stamp_names = []
def stamp(name):
    if not OPT["stamp"]:
        return []
    i = stamp_n[0]
    stamp_n[0] += 1
    stamp_names.append(name)
    assert sStamp + 2 * i + 1 < 102
    return [op(f"s_memtime s[{sStamp + 2 * i}:{sStamp + 2 * i + 1}]"), op("s_waitcnt lgkmcnt(0)")]

def lane_id(v):
    return [op(f"v_mbcnt_lo_u32_b32 v{v}, -1, 0"), op(f"v_mbcnt_hi_u32_b32 v{v}, -1, v{v}")]

class Frag:
    def __init__(self, tr, addr, off, slot, tag):
        self.tr, self.addr, self.off, self.slot, self.tag = tr, addr, off, slot, tag
    def reads(self, b):
        if not self.tr:
            return [op(f"ds_read_b128 v[{b}:{b + 3}], v{self.addr} offset:{self.off}", slot=self.slot, tag=self.tag)]
        return [op(f"ds_read_b64_tr_b16 v[{b + 2 * h}:{b + 2 * h + 1}], v{self.addr} offset:{self.off + 512 * h}",
                   slot=self.slot, tag=self.tag) for h in range(2)]

def wfrag(kind, step, sub, tag):
    idx = PERM[(step // 4) % 8]
    col = (sub >> 1) * 64 + (sub & 1) * 8 if kind == "W" else sub * 32
    return Frag(True, WADDR[idx // 3], (idx % 3) * S + (step % 4) * KSB + col, idx if tag else None, tag)

def kfrag(base, kt, ks, slot, tag): return Frag(False, vK, base + kt * 512 + ks * 64, slot, tag)
def vfrag(base, dt, slot, tag): return Frag(True, vV, base + dt * 32, slot, tag)

def build(frags, mf, nxt, bars, streams, xvm=None, fixed=None, tail_wait=True, name=""):
    assert len(frags) % 8 == 0
    allf = frags + nxt
    fx = {g: list(v) for g, v in (fixed or {}).items()}
    add = lambda g, xs: fx.setdefault(g, []).extend(xs)
    nper = len(frags) // 2
    xvm = xvm or {}
    for k in range(nper):
        g0 = 8 * k
        pos = (g0, g0 + 2)
        if k in bars:
            add(g0 + 1, [wait(lg="all", vm=bars[k]), op("s_barrier")])
            pos = (g0 + 2, g0 + 4)
        for e in range(2):
            fi = 2 * (k + 2) + e
            if fi < len(allf):
                add(pos[e], allf[fi].reads(F(fi)))
        lastper = k == nper - 1
        if lastper and not tail_wait:
            continue
        if 2 * (k + 1) < len(allf):
            need = None if k in bars else rng("v", F(2 * k + 2), 8)
            if need or (k + 1) in xvm:
                w = wait(lg=need, vm=xvm.get(k + 1))
                w.meta["last"] = True
                add(g0 + (6 if lastper else 7), [w])
    mfs = []
    for fi in range(len(frags)):
        mfs += mf(fi, f"v[{F(fi)}:{F(fi) + 3}]")
    out, left, over = sched(mfs, fx, streams)
    stats.append((name, len(mfs), over, sum(x.cost for x in left)))
    return out + left

stats = []

def dma_kv(which, base, const, slot, tag):
    sr, so = (sK, sKoff) if which == "K" else (sV, sVoff)
    xs = [op(f"s_add_u32 m0, s{base}, {const}")]
    for i in range(4):
        xs.append(op(f"buffer_load_dwordx4 v{vD}, {srd(sr)}, s{so} offen offset:{512 * i} {OPT['kvflag']} lds",
                     slot=slot, tag=tag, newgap=True))
        xs.append(op("s_add_u32 m0, m0, 544") if i < 3 else op(f"s_add_u32 s{so}, s{so}, 16384"))
    return xs

def dma_w(idx, tag):
    xs = [op(f"s_add_u32 m0, s{sLdsW}, {idx * S}"), op(f"s_add_u32 s{sT}, s{sNoff}, s{sNrow}")]
    for i in range(4):
        so = sNoff if i == 0 else sT
        xs.append(op(f"buffer_load_dwordx4 v{vD}, {srd(sN)}, s{so} offen lds", slot=idx, tag=tag))
        if i < 3:
            xs.append(op(f"s_add_u32 m0, m0, {BLK}"))
            xs.append(op(f"s_add_u32 s{sT}, s{sT}, s{sNrow}") if i > 0 else op(f"s_add_u32 s{sNoff}, s{sNoff}, s{sNinc}"))
    xs += [op(f"s_cmp_ge_u32 s{sNoff}, s{sNlim}"), op(f"s_cselect_b32 s{sA0}, s{sNwrap}, 0", glue=True),
           op(f"s_add_u32 s{sNoff}, s{sNoff}, s{sA0}")]
    return xs

def at(xs, e, d=None): return [(x, e, d) for x in xs]

def vd_kv():
    t = TM0
    return lane_id(vD) + [op(f"v_lshrrev_b32 v{t}, 5, v{vD}"), op(f"v_and_b32 v{vD}, 31, v{vD}"),
                          op(f"v_lshlrev_b32 v{t}, 13, v{t}"), op(f"v_lshl_add_u32 v{vD}, v{vD}, 4, v{t}")]

def vd_w(t):
    return lane_id(vD) + [op(f"v_bfe_u32 v{t}, v{vD}, 3, 2"), op(f"v_mul_lo_u32 v{t}, v{t}, s{sNa}"),
                          op(f"v_lshrrev_b32 v{t + 1}, 5, v{vD}"), op(f"v_mul_lo_u32 v{t + 1}, v{t + 1}, s{sNb}"),
                          op(f"v_and_b32 v{vD}, 7, v{vD}"), op(f"v_lshl_add_u32 v{vD}, v{vD}, 4, v{t}"),
                          op(f"v_add_u32 v{vD}, v{vD}, v{t + 1}")]

def waddr(kind, dst, base, t):
    return lane_id(dst) + [op(f"v_bfe_u32 v{t}, v{dst}, 2, 2"), op(f"v_mul_u32_u24 v{t}, {BLK}, v{t}"),
                           op(f"v_lshrrev_b32 v{t + 1}, 4, v{dst}"), op(f"v_lshl_add_u32 v{t}, v{t + 1}, 7, v{t}"),
                           op(f"v_and_b32 v{dst}, 3, v{dst}"),
                           op(f"v_lshl_add_u32 v{dst}, v{dst}, {4 if kind == 'W' else 3}, v{t}"),
                           op(f"v_add_u32 v{dst}, {base}, v{dst}")]

def kaddr(t):
    return lane_id(vK) + [op(f"v_and_b32 v{t}, 15, v{vK}"), op(f"v_mul_u32_u24 v{t}, {BLK}, v{t}"),
                          op(f"v_lshrrev_b32 v{vK}, 4, v{vK}"), op(f"v_lshl_add_u32 v{vK}, v{vK}, 4, v{t}")]

def vaddr(t):
    return lane_id(vV) + [op(f"v_lshrrev_b32 v{t}, 2, v{vV}"), op(f"v_mul_u32_u24 v{t}, {BLK}, v{t}"),
                          op(f"v_and_b32 v{vV}, 3, v{vV}"), op(f"v_lshl_add_u32 v{vV}, v{vV}, 3, v{t}"),
                          op(f"v_add_u32 v{vV}, {4 * S}, v{vV}")]

def set_stream(kind, second):
    xs = []
    if kind == "W":
        xs += [op(f"s_lshl_b32 s{sA0}, s{sHp}, 10")]
        if not second:
            xs += [op(f"s_add_u32 s{sA0}, s{sA0}, 512")]
        xs += [op(f"s_add_u32 s{sN}, s{pWq}, s{sA0}"), op(f"s_addc_u32 s{sN + 1}, s{pWq + 1}, 0", glue=True),
               op(f"s_sub_u32 s{sN + 2}, {448 * 8192}, s{sA0}")]
        row, nks, a, b = 8192, 14, 8 * 8192, 4 * 8192
    else:
        xs += [op(f"s_mul_i32 s{sA0}, s{sHp}, {512 * 896}"),
               op(f"s_add_u32 s{sN}, s{pWo}, s{sA0}"), op(f"s_addc_u32 s{sN + 1}, s{pWo + 1}, 0", glue=True),
               op(f"s_mov_b32 s{sN + 2}, {512 * 896}")]
        row, nks, a, b = 896, 16, 4 * 896, 16 * 896
    xs += [op(f"s_mul_i32 s{sNoff}, s{sWave}, {32 * row}"), op(f"s_mov_b32 s{sNinc}, {128 * row}"),
           op(f"s_mov_b32 s{sNlim}, {nks * 32 * row}"), op(f"s_mov_b32 s{sNwrap}, {u32(128 - nks * 32 * row)}"),
           op(f"s_mov_b32 s{sNrow}, {row}"), op(f"s_mov_b32 s{sNa}, {a}"), op(f"s_mov_b32 s{sNb}, {b}")]
    return xs

def set_kv(second):
    xs = [op(f"s_lshl_b32 s{sA0}, s{sB}, 4"), op(f"s_lshl_b32 s{sA1}, s{sHp}, 1"), op(f"s_add_u32 s{sA0}, s{sA0}, s{sA1}")]
    if not second:
        xs.append(op(f"s_add_u32 s{sA0}, s{sA0}, 1"))
    xs.append(op(f"s_lshl_b32 s{sA0}, s{sA0}, 18"))
    for d, p in ((sK, pK), (sV, pV)):
        xs += [op(f"s_add_u32 s{d}, s{p}, s{sA0}"), op(f"s_addc_u32 s{d + 1}, s{p + 1}, 0")]
    xs += [op(f"s_lshl_b32 s{sKoff}, s{sWave}, 11"), op(f"s_lshl_b32 s{sVoff}, s{sWave}, 11")]
    return xs

def xoff(v, t):
    return lane_id(v) + [op(f"v_and_b32 v{t}, 15, v{v}"), op(f"s_lshl_b32 s{sA0}, s{sWave}, 6"),
                         op(f"v_add_u32 v{t}, s{sA0}, v{t}"), op(f"v_mul_u32_u24 v{t}, 896, v{t}"),
                         op(f"v_lshrrev_b32 v{v}, 4, v{v}"), op(f"v_lshl_add_u32 v{v}, v{v}, 4, v{t}")]

def xloads(kp, v):
    xs = []
    for t in range(4):
        for ks in (2 * kp, 2 * kp + 1):
            a = Oacc(ks, t)
            so = "0" if t == 0 else f"s{sXt + t - 1}"
            xs.append(op(f"buffer_load_dwordx4 a[{a}:{a + 3}], v{v}, {srd(sX)}, {so} offen offset:{64 * ks}",
                         tag=lambda c, kp=kp: ("x", c["nitem"], kp)))
    return xs

def prologue():
    b = [op("s_cmp_ge_u32 s2, 256"), op("s_cbranch_scc1 L_end"),
         op("s_load_dwordx16 s[72:87], s[0:1], 0"), op("s_load_dwordx4 s[88:91], s[0:1], 64"),
         op("s_load_dwordx2 s[92:93], s[0:1], 96"),
         op("v_lshrrev_b32 v1, 6, v0"), op("s_nop 0"), op(f"v_readfirstlane_b32 s{sWave}, v1"),
         op(f"s_bfe_u32 s{sBr}, s2, {(1 << 16) | 2}"),
         op(f"s_bfe_u32 s{sA0}, s2, {(1 << 16) | 1}"), op(f"s_lshl_b32 s{sA0}, s{sA0}, 3"),
         op(f"s_lshr_b32 s{sB}, s2, 5"), op(f"s_add_u32 s{sB}, s{sB}, s{sA0}"),
         op(f"s_and_b32 s{sA0}, s2, 1"), op(f"s_lshl_b32 s{sA0}, s{sA0}, 2"),
         op(f"s_bfe_u32 s{sHp}, s2, {(2 << 16) | 3}"), op(f"s_add_u32 s{sHp}, s{sHp}, s{sA0}"),
         op(f"s_mul_i32 s{sLdsW}, s{sWave}, {KSB}"),
         op(f"s_cmp_eq_u32 s{sWave}, 3"),
         op(f"s_cselect_b32 s{sPad}, 0x40000000, 0"), op(f"s_cselect_b32 s{sPadM}, {f2u(1000.0)}, 0"),
         op(f"s_cselect_b32 s{sPadL}, 1.0, 0"),
         op(f"s_mov_b32 s{sXt}, 14336"), op(f"s_mov_b32 s{sXt + 1}, 28672"), op(f"s_mov_b32 s{sXt + 2}, 43008"),
         op(f"s_mov_b32 s{sC}, {f2u(math.log2(math.e) / 16)}"), op(f"s_mov_b32 s{sItem}, 0")]
    for d in (sX, sK, sV, sN, sP):
        b.append(op(f"s_mov_b32 s{d + 3}, 0x20000"))
    b += [op(f"s_mov_b32 s{sX + 2}, 215040"), op(f"s_mov_b32 s{sK + 2}, 262144"), op(f"s_mov_b32 s{sV + 2}, 262144"),
          op(f"s_mov_b32 s{sP + 2}, {WREG}"),
          op("s_waitcnt lgkmcnt(0)"), op(f"s_cmp_eq_u32 s{sBr}, 0"),
          op(f"s_cselect_b64 s[{pWq}:{pWq + 1}], s[78:79], s[88:89]"), op(f"s_cselect_b64 s[{pWo}:{pWo + 1}], s[80:81], s[90:91]"),
          op(f"s_cselect_b64 s[{pK}:{pK + 1}], s[74:75], s[84:85]"), op(f"s_cselect_b64 s[{pV}:{pV + 1}], s[76:77], s[86:87]"),
          op(f"s_cselect_b64 s[{sX}:{sX + 1}], s[72:73], s[82:83]")]
    b += set_stream("W", False) + vd_w(TM0)
    c = {"tagW": lambda s: (lambda ctx: ("W", 0, s))}
    b += dma_w(PERM[0], c["tagW"](0)) + dma_w(PERM[1], c["tagW"](1))
    b += [op(f"s_mul_i32 s{sA1}, s{sB}, 215040"), op(f"s_add_u32 s{sX}, s{sX}, s{sA1}"), op(f"s_addc_u32 s{sX + 1}, s{sX + 1}, 0")]
    b += xoff(TS0, TM0)
    b += xloads(0, TS0) + xloads(1, TS0)
    b += dma_w(PERM[2], c["tagW"](2)) + dma_w(PERM[3], c["tagW"](3))
    for kp in range(2, 7):
        b += xloads(kp, TS0)
    b += set_kv(False)
    b += [op(f"s_lshl_b32 s{sA0}, s{sBr}, 4"), op(f"s_add_u32 s{sA0}, s{sA0}, s{sB}"), op(f"s_lshl_b32 s{sA0}, s{sA0}, 3"),
          op(f"s_add_u32 s{sA0}, s{sA0}, s{sHp}"), op(f"s_lshl_b32 s{sA0}, s{sA0}, 2"), op(f"s_add_u32 s{sA0}, s{sA0}, s{sWave}"),
          op(f"s_mul_i32 s{sA0}, s{sA0}, {WREG}"),
          op(f"s_add_u32 s{sP}, s92, s{sA0}"), op(f"s_addc_u32 s{sP + 1}, s93, 0")]
    if OPT["stamp"]:
        b += [op("s_mov_b32 s70, s92"), op("s_mov_b32 s71, s93")]
    b += waddr("W", vK, 0, TM0) + [op(f"v_add_u32 v{vW}, {3 * S}, v{vK}"), op(f"v_add_u32 v{vV}, {6 * S}, v{vK}")]
    for s in range(4, 8):
        b += dma_w(PERM[s], c["tagW"](s))
    b += stamp("issued")
    b += [wait(vm=lambda ctx: [("W", 0, 0), ("W", 0, 1)]), op("s_barrier")]
    for fi, fr in enumerate(w_head("W", lambda ctx: 0)):
        b += fr.reads(F(fi))
    return b

def w_head(kind, item):
    return [wfrag(kind, 0, sub, lambda ctx: (kind, item(ctx), 0)) for sub in range(4)]

def qacc(u, dtl, t):
    if u in (0, 2): return "v", 128 + (dtl * 4 + t) * 4
    if u == 1: return "v", 64 + (dtl * 4 + t) * 4
    return ("v", Q(6 + dtl, t)) if dtl < 2 else ("a", 224 + ((dtl - 2) * 4 + t) * 4)

def q_drain(u):
    xs = []
    for p in range(2):
        for t in range(4):
            d = Q(2 * u + p, t)
            for h in range(2):
                f, a = qacc(u, 2 * p + h, t)
                if f == "a":
                    tb = TS0 + 4 * h
                    xs += [op(f"v_accvgpr_read_b32 v{tb + i}, a{a + i}") for i in range(4)]
                    a = tb
                for e in range(2):
                    xs += [op(f"v_mul_f32 v{a + 2 * e}, s{sC}, v{a + 2 * e}"), op(f"v_mul_f32 v{a + 2 * e + 1}, s{sC}, v{a + 2 * e + 1}")]
                    xs.append(op(f"v_cvt_pk_bf16_f32 v{d + 2 * h + e}, v{a + 2 * e}, v{a + 2 * e + 1}", qd=(2 * u + p, t)))
    return xs

def q_phase():
    it = lambda c: c["item"]
    frags, desc = [], []
    for s in range(56):
        for dtl in range(4):
            frags.append(wfrag("W", s, dtl, lambda c, s=s: ("W", it(c), s // 4)))
            desc.append(("q", s, dtl))
    for ks in range(8):
        for kt in range(2):
            frags.append(kfrag(S, kt, ks, Kslot(0), lambda c: ("K", it(c), 0)))
            desc.append(("k", kt, ks))
    nxt = [kfrag(0, 0, ks, Kslot(1), lambda c: ("K", it(c), 1)) for ks in range(4)]

    def mf(fi, fr):
        d = desc[fi]
        xs = []
        for t in range(4):
            if d[0] == "q":
                u, ks = divmod(d[1], 14)
                f, a = qacc(u, d[2], t)
                acc = f"{f}[{a}:{a + 3}]"
                x = Oacc(ks, t)
                xs.append(op(f"{MF} {acc}, {fr}, a[{x}:{x + 3}], {acc if ks else 0}"))
            else:
                _, kt, ks = d
                acc = f"v[{Sr(kt, t)}:{Sr(kt, t) + 3}]"
                xs.append(op(f"{MF} {acc}, {fr}, v[{Q(ks, t)}:{Q(ks, t) + 3}], {acc if ks else 0}"))
        return xs

    tg = lambda *names: (lambda c: [(n, it(c), i) for n, i in names])
    bars = {16 * n + 14: tg(("W", 2 * n + 2), ("W", 2 * n + 3)) for n in range(6)}
    bars[16 * 6 + 14] = tg(("K", 0))
    bars[112 + 6] = tg(("K", 1), ("V", 0))
    one = lambda n, i: (lambda c: (n, it(c), i))
    dma = []
    after = lambda n: 128 * n + 8 * 14 + 2
    for n in range(3):
        for s in (2 * n + 8, 2 * n + 9):
            dma += at(dma_w(PERM[s % 8], one("W", s)), after(n))
    dma += at(vd_kv(), after(2))
    kv = lambda w, j: dma_kv(w, sLdsW, (Kslot(j) if w == "K" else Vslot(j)) * S, Kslot(j) if w == "K" else Vslot(j), one(w, j))
    dma += at(kv("K", 0) + kv("K", 1), after(3)) + at(kv("V", 0) + kv("K", 2), after(4))
    dma += at(kv("V", 1) + kv("K", 3), after(5)) + at(kv("V", 2), after(6))
    drain = []
    for u in range(4):
        e = 224 * (u + 1) + 3
        for x in q_drain(u):
            dl = {0: 448, 1: 672, 2: 896}.get(u)
            if u == 3 and "qd" in x.meta:
                dl = 896 + 8 * x.meta["qd"][0] + x.meta["qd"][1] - 1
            drain.append((x, e, dl))
    misc = at(kaddr(L0), 128 * 6 + 4, 128 * 6 + 8 * 14)
    misc += at(vaddr(L0), 896 + 2, 896 + 60)
    misc += at([op(f"s_mov_b32 s{sPp}, s{sLdsW}"), op(f"s_mov_b32 s{sMm}, s{sLdsW}"), op(f"s_mov_b32 s{sDl}, {2 * S}"),
                op(f"s_mov_b32 s{sLoop}, 5")], 896 + 2, 896 + 60)
    fixed = {896 + 45: [op(f"v_add_u32 v{vK}, {2 * S}, v{vK}")]}
    xvm = {4 * kp: (lambda c, kp=kp: [("x", it(c), kp)]) for kp in range(1, 7)}
    head = [wait(lg=rng("v", F(0), 8), vm=lambda c: [("x", it(c), 0)])]
    body = build(frags, mf, nxt, bars, [dma, drain, misc], xvm=xvm, fixed=fixed, tail_wait=False, name="Q+QK0")
    return [label("L_item")] + stamp_item("q0") + head + body + stamp_item("q1") + first_softmax() + [wait(lg=rng("v", F(0), 8))] + stamp_item("a0")

def stamp_item(name):
    if not OPT["stamp"]:
        return []
    i = stamp_n[0]
    stamp_n[0] += 2
    stamp_names.extend([name + "_i0", name + "_i1"])
    r = sStamp + 2 * i
    assert r + 3 < 102
    return [op(f"s_memtime s[{r + 2}:{r + 3}]"), op("s_waitcnt lgkmcnt(0)"), op(f"s_cmp_eq_u32 s{sItem}, 0"),
            op(f"s_cselect_b64 s[{r}:{r + 1}], s[{r + 2}:{r + 3}], s[{r}:{r + 1}]")]

def xlane(v, t, ins):
    xs = []
    for sw in ("v_permlane32_swap_b32", "v_permlane16_swap_b32"):
        xs += [op(f"v_mov_b32 v{t}, v{v}"), op("s_nop 1"), op(f"{sw} v{t}, v{v}"), op(f"{ins} v{v}, v{t}, v{v}")]
    return xs

def row_max(t, d):
    a, b = Sr(0, t), Sr(1, t)
    return [op(f"v_max3_f32 v{d}, v{a}, v{a + 1}, v{a + 2}"), op(f"v_max3_f32 v{d}, v{d}, v{a + 3}, v{b}"),
            op(f"v_max3_f32 v{d}, v{d}, v{b + 1}, v{b + 2}"), op(f"v_max_f32 v{d}, v{d}, v{b + 3}")]

def exp_inplace(par, t):
    regs = [Sr(0, t) + i for i in range(4)] + [Sr(1, t) + i for i in range(4)]
    xs = [op(f"v_exp_f32 v{r}, v{r}") for r in regs]
    xs.append(op(f"v_add_f32 v{TS0 + t}, v{regs[0]}, v{regs[1]}"))
    xs += [op(f"v_add_f32 v{TS0 + t}, v{TS0 + t}, v{r}") for r in regs[2:]]
    xs += [op(f"v_cvt_pk_bf16_f32 v{Pr(par, t) + e}, v{regs[2 * e]}, v{regs[2 * e + 1]}") for e in range(4)]
    return xs

def first_softmax():
    xs = [op(f"v_mov_b32 v{L0 + t}, {'0' if t < 3 else f's{sPadL}'}") for t in range(4)] + [op("s_nop 3")]
    for t in range(4):
        xs += row_max(t, TM0 + t)
    for sw in ("v_permlane32_swap_b32", "v_permlane16_swap_b32"):
        xs += [op(f"v_mov_b32 v{TS0 + t}, v{TM0 + t}") for t in range(4)]
        xs += [op(f"{sw} v{TS0 + t}, v{TM0 + t}") for t in range(4)]
        xs += [op(f"v_max_f32 v{TM0 + t}, v{TS0 + t}, v{TM0 + t}") for t in range(4)]
    xs.append(op(f"v_add_f32 v{TM0 + 3}, s{sPadM}, v{TM0 + 3}"))
    for t in range(4):
        xs += [op(f"v_sub_f32 v{Sr(kt, t) + i}, v{Sr(kt, t) + i}, v{TM0 + t}") for kt in range(2) for i in range(4)]
        xs += [op(f"v_sub_f32 v{NM(t) + i}, 0, v{TM0 + t}") for i in range(4)]
    for t in range(4):
        xs += exp_inplace(0, t)
    return xs

def fallback(par):
    m, f = TM0, TM0 + 1
    xs = [label(f"L_fb{par}"), op("s_nop 7"), op("s_nop 7")]
    for t in range(4):
        xs += row_max(t, m) + xlane(m, f, "v_max_f32")
        xs += [op(f"v_max_f32 v{m}, 0, v{m}"), op(f"v_sub_f32 v{f}, 0, v{m}"), op(f"v_exp_f32 v{f}, v{f}")]
        xs += [op(f"v_sub_f32 v{Sr(kt, t) + i}, v{Sr(kt, t) + i}, v{m}") for kt in range(2) for i in range(4)]
        xs += [op(f"v_sub_f32 v{NM(t) + i}, v{NM(t) + i}, v{m}") for i in range(4)]
        xs.append(op(f"v_mul_f32 v{L0 + t}, v{L0 + t}, v{f}"))
        for dt in range(16):
            for i in range(0, 4, 2):
                a = Oacc(dt, t) + i
                xs += [op(f"v_accvgpr_read_b32 v{TM0 + 2}, a{a}"), op(f"v_accvgpr_read_b32 v{TM0 + 3}, a{a + 1}"),
                       op(f"v_mul_f32 v{TM0 + 2}, v{TM0 + 2}, v{f}"), op(f"v_mul_f32 v{TM0 + 3}, v{TM0 + 3}, v{f}"),
                       op(f"v_accvgpr_write_b32 a{a}, v{TM0 + 2}"), op(f"v_accvgpr_write_b32 a{a + 1}, v{TM0 + 3}")]
        xs += exp_inplace(par, t)
    xs += [op("s_nop 3"), op(f"s_setpc_b64 s[{sRet}:{sRet + 1}]")]
    return xs

stubs = []

def softmax_stream(par):
    xs = []
    n = 0
    for kt in range(2):
        for t in range(4):
            e = 32 * kt + 28 + t + 6 - kt
            for h in range(2):
                a, tm = Sr(kt, t) + 2 * h, TM0 + 2 * (n & 1)
                n += 1
                ys = [op(f"v_exp_f32 v{tm}, v{a}"), op(f"v_exp_f32 v{tm + 1}, v{a + 1}")]
                if kt == 0 and h == 0:
                    ys.append(op(f"v_add_f32 v{TS0 + t}, v{tm}, v{tm + 1}", newgap=True))
                else:
                    ys += [op(f"v_add_f32 v{TS0 + t}, v{TS0 + t}, v{tm}", newgap=True), op(f"v_add_f32 v{TS0 + t}, v{TS0 + t}, v{tm + 1}")]
                ys.append(op(f"v_cvt_pk_bf16_f32 v{Pr(par, t) + 2 * kt + h}, v{tm}, v{tm + 1}"))
                xs.append((ys, e))
    out = []
    for i, (ys, e) in enumerate(xs):
        if i == 0:
            out += at(ys[:2], e)
        if i + 1 < len(xs):
            out += at(xs[i + 1][0][:1], xs[i + 1][1])
        out += at(ys[2:], e)
        if i + 1 < len(xs):
            out += at(xs[i + 1][0][1:2], xs[i + 1][1])
    thr = -1.0 if OPT["force_fb"] else OPT["thr"]
    out += at([op(f"v_max3_f32 v{TM0}, v{TS0}, v{TS0 + 1}, v{TS0 + 2}"), op(f"v_max_f32 v{TM0}, v{TM0}, v{TS0 + 3}"),
               op(f"v_cmp_lt_f32 vcc, {f2u(thr)}, v{TM0}")], 0)
    return out

def a_iter(jrep, loop_end=None, last_kind=None):
    it = lambda c: c["item"]
    odd = jrep & 1
    base = S * odd
    frags, desc = [], []
    if jrep < 15:
        for kt in range(2):
            for ks in range(8):
                frags.append(kfrag(base, kt, ks, lambda c: Kslot(c["j"] + 1), lambda c: ("K", it(c), c["j"] + 1)))
                desc.append(("k", kt, ks))
    for dt in range(16):
        frags.append(vfrag(base, dt, lambda c: Vslot(c["j"]), lambda c: ("V", it(c), c["j"])))
        desc.append(("v", dt))
    nk = lambda c: ("W", 1) if it(c) == 0 else ("T", 1)
    wt = lambda s: (lambda c: nk(c) + (s,))
    if jrep < 14:
        nxt = [kfrag(S * (1 - odd), 0, ks, lambda c: Kslot(c["j"] + 2), lambda c: ("K", it(c), c["j"] + 2)) for ks in range(4)]
        bar = lambda c: [("K", it(c), c["j"] + 2), ("V", it(c), c["j"] + 1)]
    elif jrep == 14:
        nxt = [vfrag(S, dt, Vslot(15), lambda c: ("V", it(c), 15)) for dt in range(4)]
        bar = lambda c: [("V", it(c), 15)]
    else:
        nxt = w_head(last_kind, lambda c: 1)
        bar = lambda c: [nk(c) + (0,), nk(c) + (1,)]

    def mf(fi, fr):
        d = desc[fi]
        xs = []
        for t in range(4):
            if d[0] == "k":
                _, kt, ks = d
                acc = f"v[{Sr(kt, t)}:{Sr(kt, t) + 3}]"
                c = acc if ks else f"v[{NM(t)}:{NM(t) + 3}]"
                xs.append(op(f"{MF} {acc}, {fr}, v[{Q(ks, t)}:{Q(ks, t) + 3}], {c}"))
            else:
                a = Oacc(d[1], t)
                acc = f"a[{a}:{a + 3}]"
                p = Pr(odd, t)
                xs.append(op(f"{MF} {acc}, {fr}, v[{p}:{p + 3}], {acc if jrep else 0}"))
        return xs

    dma = []
    if jrep <= 11:
        dma += dma_kv("K", sMm if odd else sPp, (2 if odd else 1) * S, lambda c: Kslot(c["j"] + 4), lambda c: ("K", it(c), c["j"] + 4))
    if jrep <= 12:
        dma += dma_kv("V", sPp if odd else sMm, (4 if odd else 7) * S, lambda c: Vslot(c["j"] + 3), lambda c: ("V", it(c), c["j"] + 3))
    dma = at(dma, 0)
    ladd = at([op(f"v_add_f32 v{L0 + t}, v{L0 + t}, v{TS0 + t}") for t in range(4)], 0, 30)
    fixed = {}
    if jrep == 12:
        sel = [op(f"s_cmp_eq_u32 s{sItem}, 0"), op("s_cbranch_scc1 L_selW"), *set_stream("T", True), op("s_branch L_selD"),
               label("L_selW"), *set_stream("W", True), label("L_selD")]
        pre = sel
        dma += at(vd_w(TM0), 12, 30)
    else:
        pre = []
    ws = {13: [0], 14: [1, 2], 15: [3, 4]}.get(jrep, [])
    for s in ws:
        dma += at(dma_w(PERM[s], wt(s)), 0)
    misc = []
    if odd and jrep < 15:
        misc += at([op(f"v_subrev_u32 v{vK}, s{sDl}, v{vK}")], 48, 112)
        misc += at([op(f"s_add_u32 s{sPp}, s{sPp}, s{sDl}"), op(f"s_sub_u32 s{sMm}, s{sMm}, s{sDl}")], 60, 112)
        misc += at([op(f"v_add_u32 v{vV}, s{sDl}, v{vV}"), op(f"s_sub_u32 s{sDl}, 0, s{sDl}")], 108, 124)
    post = []
    if jrep < 15:
        streams = [dma, ladd, misc, softmax_stream(1 - odd)]
        k = len(stubs)
        stubs.append((k, 1 - odd))
        if loop_end:
            misc += at([op(f"s_sub_u32 s{sLoop}, s{sLoop}, 1")], 108, 125)
            fixed[126] = [op(f"s_cmp_lg_u32 s{sLoop}, 0")]
        post = [op(f"s_cbranch_vccnz L_stub{k}"), label(f"L_back{k}")]
        if loop_end:
            post.append(op(f"s_cbranch_scc1 {loop_end}"))
        bars = {14: bar}
    else:
        misc += at(waddr(last_kind, vW, 3 * S, TM0), 0, 48)
        misc += at([op(f"v_subrev_u32 v{vK}, {3 * S}, v{vW}")], 0, 48)
        misc += at([op(f"v_add_u32 v{vV}, {3 * S}, v{vW}")], 44, None)
        dma += at(dma_w(PERM[5], wt(5)) + dma_w(PERM[6], wt(6)) + dma_w(PERM[7], wt(7)), 50)
        streams = [dma, ladd, misc]
        bars = {6: bar}
    body = build(frags, mf, nxt, bars, streams, fixed=fixed, tail_wait=jrep < 15, name=f"A{jrep}")
    return pre + body + post

def l_reduce():
    xs = []
    for sw in ("v_permlane32_swap_b32", "v_permlane16_swap_b32"):
        xs += [op(f"v_mov_b32 v{TS0 + t}, v{L0 + t}") for t in range(4)]
        xs += [op(f"{sw} v{TS0 + t}, v{L0 + t}") for t in range(4)]
        xs += [op(f"v_add_f32 v{L0 + t}, v{TS0 + t}, v{L0 + t}") for t in range(4)]
    xs += [op(f"v_rcp_f32 v{NM(t)}, v{L0 + t}") for t in range(4)]
    return xs

def o_group(ks, t, tmp, dst):
    xs = []
    for h in range(2):
        xs += [op(f"v_accvgpr_read_b32 v{tmp + 4 * h + i}, a{Oacc(2 * ks + h, t) + i}") for i in range(4)]
    xs += [op(f"v_pk_mul_f32 v[{tmp + 2 * e}:{tmp + 2 * e + 1}], v[{tmp + 2 * e}:{tmp + 2 * e + 1}], v[{NM(t)}:{NM(t) + 1}] op_sel_hi:[1,0]")
           for e in range(4)]
    xs += [op(f"v_cvt_pk_bf16_f32 v{dst + e}, v{tmp + 2 * e}, v{tmp + 2 * e + 1}") for e in range(4)]
    return xs

def drain1():
    vx, vl = TM0, TM0 + 1
    xs = stamp("a1_end") + l_reduce() + xoff(vx, TM0 + 2) + lane_id(vl) + [op(f"v_lshlrev_b32 v{vl}, 4, v{vl}")]
    xs += set_kv(True) + [op(f"s_mov_b32 s{sItem}, 1")]
    n = 0
    for ks in range(8):
        xs += [op(f"s_mov_b32 s{sSa}, {ks * 4096}"), op(f"s_add_u32 s{sSc}, s{sPad}, {ks * 4096}")]
        for t in range(4):
            tmp, dst = 128 + 8 * (n % 4), 160 + 4 * (n % 8)
            n += 1
            xs += o_group(ks, t, tmp, dst)
            xs.append(op(f"buffer_store_dwordx4 v[{dst}:{dst + 3}], v{vl}, {srd(sP)}, s{sSc if t == 3 else sSa} offen offset:{1024 * t}", tag="stash"))
        if ks < 7:
            xs += xloads(ks, vx)
    if OPT["stop"] == "o1":
        xs += [op("s_branch L_end")]
    xs += [op("s_branch L_item")]
    return xs

def drain2():
    vl = TM0 + 1
    xs = stamp("a2_end") + l_reduce() + lane_id(vl) + [op(f"v_lshlrev_b32 v{vl}, 4, v{vl}")]
    n = 0
    for ks in range(8):
        for t in range(4):
            xs += o_group(ks, t, 128 + 8 * (n % 4), Q(ks, t))
            n += 1
        if ks < 4:
            for k2 in (2 * ks, 2 * ks + 1):
                xs += [op(f"s_mov_b32 s{sSa}, {k2 * 4096}"), op(f"s_add_u32 s{sSc}, s{sPad}, {k2 * 4096}")]
                for t in range(4):
                    a = 16 * k2 + 4 * t
                    xs.append(op(f"buffer_load_dwordx4 a[{a}:{a + 3}], v{vl}, {srd(sP)}, s{sSc if t == 3 else sSa} offen offset:{1024 * t}",
                                 tag=("o1", k2)))
    xs += [op(f"s_mov_b32 s{sSa}, 0"), op(f"s_mov_b32 s{sSb}, 4096"), op(f"s_add_u32 s{sSc}, s{sPad}, 4096"),
           op(f"s_mov_b32 s{sLoop}, 3"), wait(lg=rng("v", F(0), 8))]
    return xs + stamp("p0")

def pacc(buf, nt, t): return 128 + 64 * buf + (nt * 4 + t) * 4

def p_drain(buf):
    vl = TM0 + 1
    xs = []
    n = 0
    for t in range(4):
        for p in range(2):
            tmp, dst = 128 + 8 * (n % 4), 160 + 4 * (n % 8)
            n += 1
            for h in range(2):
                xs += [op(f"v_accvgpr_read_b32 v{tmp + 4 * h + i}, a{pacc(buf, 2 * p + h, t) + i}") for i in range(4)]
            xs += [op(f"v_cvt_pk_bf16_f32 v{dst + e}, v{tmp + 2 * e}, v{tmp + 2 * e + 1}") for e in range(4)]
            so = (sSa, sSa, sSb, sSc)[t]
            xs.append(op(f"buffer_store_dwordx4 v[{dst}:{dst + 3}], v{vl}, {srd(sP)}, s{so} offen offset:{1024 * ((2 * t + p) % 4)} {OPT['pflag']}".rstrip(),
                         tag="part"))
    xs += [op(f"s_add_u32 s{r}, s{r}, 8192") for r in (sSa, sSb, sSc)]
    return xs

def p_chunk(urep, loop_end=None):
    buf = urep & 1
    tagf = lambda off: (lambda c: ("T", 1, 4 * c["u"] + off) if 4 * c["u"] + off < 28 else None)
    frags, desc = [], []
    for kk in range(16):
        for nt in range(4):
            frags.append(wfrag("T", 16 * urep + kk, nt, tagf(kk // 4)))
            desc.append((kk, nt))
    nxt = [wfrag("T", 16 * urep + 16, nt, tagf(4)) for nt in range(4)]
    for fr in nxt:
        idx = fr.slot
        fr.slot = lambda c, idx=idx: idx if c["u"] < 6 else None

    def mf(fi, fr):
        kk, nt = desc[fi]
        xs = []
        for t in range(4):
            a = pacc(buf, nt, t)
            acc = f"a[{a}:{a + 3}]"
            b = f"v[{Q(kk, t)}:{Q(kk, t) + 3}]" if kk < 8 else f"a[{Q(kk - 8, t)}:{Q(kk - 8, t) + 3}]"
            xs.append(op(f"{MF} {acc}, {fr}, {b}, {acc if kk else 0}"))
        return xs

    bars = {14: lambda c: [tagf(2)(c), tagf(3)(c)], 30: lambda c: [tagf(4)(c), tagf(5)(c)]}
    dma = []
    if urep > 0:
        for off in (6, 7):
            dma += at(dma_w(PERM[(4 * urep + off) % 8], tagf(off)), 0)
    if urep == 1:
        dma += at([op(f"s_cmp_eq_u32 s{sLoop}, 1"), op(f"s_cselect_b32 s{sN + 2}, 0, s{sN + 2}", glue=True)], 0)
    for off in (8, 9):
        dma += at(dma_w(PERM[(4 * urep + off) % 8], tagf(off)), 8 * 14 + 2)
    streams = [dma]
    if urep > 0:
        streams.append(at(p_drain(1 - buf), 4, 250))
    fixed, post = {}, []
    if loop_end:
        streams.append(at([op(f"s_sub_u32 s{sLoop}, s{sLoop}, 1")], 200, 250))
        fixed[254] = [op(f"s_cmp_lg_u32 s{sLoop}, 0")]
        post = [op(f"s_cbranch_scc1 {loop_end}")]
    xvm = {2 * (8 + k2): [("o1", k2)] for k2 in range(8)} if urep == 0 else None
    return build(frags, mf, nxt, bars, streams, xvm=xvm, fixed=fixed, name=f"P{urep}") + post

def write_stamps():
    if not OPT["stamp"]:
        return []
    xs = stamp("end")
    n = stamp_n[0]
    xs += [op("s_memrealtime s[4:5]"), op("s_waitcnt lgkmcnt(0)"),
           op(f"s_lshl_b32 s{sA0}, s2, 2"), op(f"s_add_u32 s{sA0}, s{sA0}, s{sWave}"), op(f"s_lshl_b32 s{sA0}, s{sA0}, 7"),
           op(f"s_add_u32 s{sA0}, s{sA0}, {STAMP_OFF}"), op(f"s_add_u32 s{sP}, s70, s{sA0}"), op(f"s_addc_u32 s{sP + 1}, s71, 0"),
           op(f"s_mov_b32 s{sP + 2}, 128"), op("v_mov_b32 v1, 0")]
    for i in range(n):
        xs += [op(f"v_mov_b32 v0, s{sStamp + 2 * i}"), op(f"buffer_store_dword v0, v1, {srd(sP)}, 0 offen offset:{4 * i}")]
    xs += [op("v_mov_b32 v0, s4"), op(f"buffer_store_dword v0, v1, {srd(sP)}, 0 offen offset:{4 * n}")]
    return xs

def debug_dump_q():
    vl = TM0 + 1
    xs = lane_id(vl) + [op(f"v_lshlrev_b32 v{vl}, 4, v{vl}")]
    for ks in range(8):
        xs.append(op(f"s_mov_b32 s{sSa}, {ks * 4096}"))
        for t in range(4):
            xs.append(op(f"buffer_store_dwordx4 v[{Q(ks, t)}:{Q(ks, t) + 3}], v{vl}, {srd(sP)}, s{sSa} offen offset:{1024 * t}", tag="dbg"))
    return xs + [op("s_branch L_end")]

def reduce_kernel():
    t = []
    e = t.append
    e("red_kernel:")
    for x in ["s_cmp_ge_u32 s2, 840", "s_cbranch_scc1 R_end",
              "s_load_dwordx2 s[4:5], s[0:1], 96", "s_load_dwordx2 s[8:9], s[0:1], 80",
              "v_lshrrev_b32 v1, 6, v0", "v_and_b32 v0, 63, v0", "v_readfirstlane_b32 s3, v1",
              "s_lshl_b32 s12, s2, 2", "s_nop 1", "s_add_u32 s12, s12, s3",
              f"s_mul_hi_u32 s13, s12, {-(-(1 << 32) // 105)}", "s_mul_i32 s14, s13, 105", "s_sub_u32 s14, s12, s14",
              f"s_mul_hi_u32 s15, s14, {-(-(1 << 32) // 15)}", "s_mul_i32 s16, s15, 15", "s_sub_u32 s16, s14, s16",
              "s_lshr_b32 s17, s16, 2", "s_and_b32 s18, s16, 3",
              f"s_mul_i32 s19, s13, {8 * GREG}", f"s_mul_i32 s20, s17, {WREG}", "s_add_u32 s19, s19, s20",
              "s_lshl_b32 s20, s15, 13", "s_add_u32 s19, s19, s20", "s_lshl_b32 s20, s18, 11", "s_add_u32 s19, s19, s20",
              "v_lshlrev_b32 v1, 4, v0",
              "s_mov_b32 s6, " + str(256 * GREG), "s_mov_b32 s7, 0x20000", "s_mov_b32 s10, 6881280", "s_mov_b32 s11, 0x20000",
              "s_waitcnt lgkmcnt(0)"]:
        e("  " + x)
    for i in range(8):
        for p in range(2):
            r = 8 + 8 * i + 4 * p
            e(f"  buffer_load_dwordx4 v[{r}:{r + 3}], v1, s[4:7], s19 offen offset:{1024 * p} {OPT.get('rflag', '')}".rstrip())
        if i < 7:
            e(f"  s_add_u32 s19, s19, {GREG}")
    for x in ["s_and_b32 s20, s13, 15", "s_mul_i32 s20, s20, 240", "s_lshl_b32 s21, s16, 4", "s_add_u32 s20, s20, s21",
              "s_mul_i32 s20, s20, 1792", "s_lshr_b32 s21, s13, 4", "s_mul_i32 s21, s21, 896", "s_add_u32 s20, s20, s21",
              "s_lshl_b32 s21, s15, 7", "s_add_u32 s20, s20, s21",
              "v_and_b32 v2, 15, v0", "v_mul_u32_u24 v2, 1792, v2", "v_lshrrev_b32 v3, 4, v0", "v_lshl_add_u32 v2, v3, 4, v2"]:
        e("  " + x)
    for i in range(8):
        e(f"  s_waitcnt vmcnt({14 - 2 * i})")
        for k in range(8):
            r = 8 + 8 * i + k
            if i == 0:
                e(f"  v_lshlrev_b32 v{72 + 2 * k}, 16, v{r}")
                e(f"  v_and_b32 v{73 + 2 * k}, 0xffff0000, v{r}")
            else:
                e(f"  v_lshlrev_b32 v4, 16, v{r}")
                e(f"  v_and_b32 v5, 0xffff0000, v{r}")
                e(f"  v_add_f32 v{72 + 2 * k}, v{72 + 2 * k}, v4")
                e(f"  v_add_f32 v{73 + 2 * k}, v{73 + 2 * k}, v5")
    for k in range(8):
        e(f"  v_cvt_pk_bf16_f32 v{8 + k}, v{72 + 2 * k}, v{73 + 2 * k}")
    e("  s_nop 1")
    for sw in ("v_permlane32_swap_b32", "v_permlane16_swap_b32"):
        for p in range(2):
            for k in range(2):
                e(f"  {sw} v{8 + 4 * p + k}, v{10 + 4 * p + k}")
    for p in range(2):
        e(f"  buffer_store_dwordx4 v[{8 + 4 * p}:{11 + 4 * p}], v2, s[8:11], s20 offen offset:{64 * p}")
    e("R_end:")
    e("  s_endpgm")
    return t

def check_glue(blocks):
    for blk in blocks:
        prev = None
        for ins in blk:
            if ins.kind == "salu":
                if ins.meta.get("glue"):
                    mn = prev.text.split()[0]
                    want = "s_cmp" if "cselect" in ins.text else "s_add_u32"
                    assert mn.startswith(want), (prev, ins)
                    if "cselect" not in ins.text:
                        assert prev.w and int(list(prev.w)[0][1:]) + 1 == int(list(ins.w)[0][1:]), (prev, ins)
                if not ins.text.startswith(("s_mov", "s_mul_i32", "s_cselect")):
                    prev = ins
            elif ins.text.startswith("s_cbranch_scc"):
                assert prev.text.startswith("s_cmp"), (prev, ins)

def generate():
    del stats[:], stubs[:], stamp_names[:]
    stamp_n[0] = 0
    pro = stamp("start") + prologue()
    qp = q_phase()
    if OPT["stop"] == "q":
        qp += debug_dump_q()
    a0, a1 = a_iter(0), a_iter(1)
    l0 = [label("L_aloop")] + a_iter(2)
    l1 = a_iter(3, loop_end="L_aloop")
    a12, a13, a14 = a_iter(12), a_iter(13), a_iter(14)
    a14 += [op(f"s_cmp_lg_u32 s{sItem}, 0"), op("s_cbranch_scc1 L_last")]
    a15w, a15t = a_iter(15, last_kind="W"), [label("L_last")] + a_iter(15, last_kind="T")
    d1, d2 = drain1(), drain2()
    p0 = p_chunk(0)
    p1 = [label("L_ploop")] + p_chunk(1)
    p2 = p_chunk(2, loop_end="L_ploop")
    pend = [op("s_nop 3")] + p_drain(0) + write_stamps() + [label("L_end"), op("s_endpgm")]
    fb = [fallback(0), fallback(1)]
    stb = []
    for k, par in stubs:
        stb += [label(f"L_stub{k}"), op(f"s_call_b64 s[{sRet}:{sRet + 1}], L_fb{par}"), op(f"s_branch L_back{k}")]
    blocks = [pro, qp, a0, a1, l0, l1, a12, a13, a14, a15w, d1, a15t, d2, p0, p1, p2, pend, stb] + fb
    trace = [(pro, dict(item=0, nitem=0))]
    for item in range(2):
        c = lambda **k: dict(item=item, nitem=1, **k)
        trace += [(qp, c()), (a0, c(j=0)), (a1, c(j=1))]
        for j in range(2, 12, 2):
            trace += [(l0, c(j=j)), (l1, c(j=j + 1))]
        trace += [(a12, c(j=12)), (a13, c(j=13)), (a14, c(j=14))]
        trace += [(a15w, c(j=15)), (d1, c())] if item == 0 else [(a15t, c(j=15)), (d2, c())]
    trace.append((p0, dict(u=0)))
    for u in (1, 3, 5):
        trace += [(p1, dict(u=u)), (p2, dict(u=u + 1))]
    trace.append((pend, {}))
    log = []
    pads = fix_hazards(trace, log)
    for f in fb:
        pads += fix_hazards([(f, {})], log)
    simulate(trace, True)
    simulate(trace, False)
    finish_waits(blocks)
    check_glue(blocks)
    hdr = open(os.path.join(os.path.dirname(os.path.abspath(__file__)), "header.txt")).read().rstrip("\n").split("\n")
    out = hdr + [f"; @launch kernel={NAME}_kernel grid=(256,1,1) block=(256,1,1) lds={LDS_BYTES}",
                 "; @launch kernel=red_kernel grid=(840,1,1) block=(256,1,1) lds=0",
                 '.amdgcn_target "amdgcn-amd-amdhsa--gfx950"', ".text", f".globl {NAME}_kernel", ".p2align 8",
                 f".type {NAME}_kernel,@function", f"{NAME}_kernel:"]
    for blk in blocks:
        for ins in blk:
            out.append(ins.text if ins.kind == "label" else "  " + ins.text)
    out += [".globl red_kernel", ".p2align 8", ".type red_kernel,@function"] + reduce_kernel()
    out += ['.section .rodata,"a"']
    for nm, vg, acc in ((f"{NAME}_kernel", 512, 256), ("red_kernel", 96, 96)):
        out += [".p2align 6", f".amdhsa_kernel {nm}", f"  .amdhsa_next_free_vgpr {vg}", "  .amdhsa_next_free_sgpr 102",
                f"  .amdhsa_accum_offset {acc}", "  .amdhsa_group_segment_fixed_size 0", "  .amdhsa_kernarg_size 104",
                "  .amdhsa_user_sgpr_count 2", "  .amdhsa_user_sgpr_kernarg_segment_ptr 1",
                "  .amdhsa_system_sgpr_workgroup_id_x 1", ".end_amdhsa_kernel"]
    return "\n".join(out) + "\n", log

if __name__ == "__main__":
    path = sys.argv[1]
    for kv in sys.argv[2:]:
        k, v = kv.split("=", 1)
        OPT[k] = eval(v)
    text, log = generate()
    open(path, "w").write(text)
    for s in stats:
        print("%-8s mfma %4d over %3d left %3d" % s)
    for l in log:
        print(l)
    if OPT["stamp"]:
        print("stamps:", stamp_names)
        open(path + ".stamps", "w").write(" ".join(stamp_names))
```
